```python
import torch

def _softmax(x, axis=-1):
    return torch.softmax(x, dim=axis)
def _gelu(x):
    return torch.nn.functional.gelu(x, approximate="tanh")
def _silu(x):
    return torch.nn.functional.silu(x)
def _sigmoid(x):
    return torch.sigmoid(x)
def _layernorm(x, axis=-1, eps=1e-5):
    m = x.mean(dim=axis, keepdim=True)
    v = x.var(dim=axis, keepdim=True, unbiased=False)
    return (x - m) / torch.sqrt(v + eps)
def _scatter_add(tgt, idx, src, axis=0):
    return tgt.clone().index_add_(axis, idx, src)
def _segment_sum(src, seg, n):
    out = torch.zeros((n,) + src.shape[1:], dtype=src.dtype)
    return out.index_add_(0, seg, src)
def _pad(x, pw):
    flat = tuple(v for pair in reversed(pw) for v in pair)
    return torch.nn.functional.pad(x, flat)

kernel_name = 'standalone__mha_block_cached__near_ridge'

def setup_inputs():

    _w = (lambda a: (lambda t: t.to(torch.bfloat16) if t.is_floating_point() else t)(torch.as_tensor(a)))
    B, Sq, D = 8, 64, 640
    H, Sk, Dh = 32, 64, 192
    return {
        "x": _w((lambda *s: torch.randn(*s, dtype=torch.bfloat16) * 0.8)(B, Sq, D)),
        "k_cache": _w((lambda *s: torch.randn(*s, dtype=torch.bfloat16) * 0.8)(B, H, Sk, Dh)),
        "v_cache": _w((lambda *s: torch.randn(*s, dtype=torch.bfloat16) * 0.05)(B, H, Sk, Dh)),
        "wq": _w((lambda *s: torch.randn(*s, dtype=torch.bfloat16) * 0.8)(D, H * Dh) * (D ** -0.5)),
        "wo": _w((lambda *s: torch.randn(*s, dtype=torch.bfloat16) * 0.05)(H * Dh, D) * ((H * Dh) ** -0.5)),
    }

def reference(x, k_cache, v_cache, wq, wo):
    B, Sq, D = x.shape
    H, Dh = 32, 192
    q = (lambda x, *d: x.permute(*d))((x @ wq).reshape(B, Sq, H, Dh), 0, 2, 1, 3)
    scores = torch.einsum("bhqd,bhkd->bhqk", q, k_cache) * (Dh ** -0.5)
    p = _softmax(scores, axis=-1)
    o = torch.einsum("bhqk,bhkd->bhqd", p, v_cache)
    return (lambda x, *d: x.permute(*d))(o, 0, 2, 1, 3).reshape(B, Sq, H * Dh) @ wo
```

```python
import sys

class Asm:
    def __init__(self):
        self.L = []
    def __call__(self, s):
        for line in s.strip("\n").split("\n"):
            self.L.append("    " + line.strip())
    def label(self, s):
        self.L.append(s + ":")
    def raw(self, s):
        self.L.append(s)
    def text(self):
        return "\n".join(self.L) + "\n"

def vr(a, n):
    return f"v[{a}:{a+n-1}]"
def sr(a, n):
    return f"s[{a}:{a+n-1}]"

R0, R1, R2, R3, RA = 0, 24576, 49152, 73728, 98304
RING1_BASE = 49152
RING1_SLOT = 16384
RING1_N = 7
RING1_END = RING1_BASE + RING1_N * RING1_SLOT
LDS_BYTES = 163840
WS_O = 0
WS_P = 8 << 20

def prologue(a, name):
    a.raw(f".globl {name}\n.p2align 8\n.type {name},@function")
    a.label(name)
    a(f"""
    s_cmp_ge_u32 s2, 256
    s_cbranch_scc1 {name}_end
    s_load_dwordx16 s[16:31], s[0:1], 0
    v_lshrrev_b32 v1, 6, v0
    v_and_b32 v2, 63, v0
    v_readfirstlane_b32 s3, v1
    s_and_b32 s4, s2, 7
    s_lshr_b32 s5, s2, 3
    s_lshr_b32 s7, s5, 3
    s_and_b32 s5, s5, 7
    s_lshl_b32 s6, s4, 2
    s_add_u32 s6, s6, s7
    s_waitcnt lgkmcnt(0)
    """)

def srd(a, d, base, off_sgpr, size):
    if off_sgpr is None:
        a(f"s_mov_b32 s{d}, s{base}\ns_mov_b32 s{d+1}, s{base+1}")
    else:
        a(f"s_add_u32 s{d}, s{base}, s{off_sgpr}\ns_addc_u32 s{d+1}, s{base+1}, 0")
    a(f"s_mov_b32 s{d+2}, {size}\ns_mov_b32 s{d+3}, 0x20000")

def descriptor(a, name, vgpr=256, sgpr=96):
    a.raw(f""".section .rodata,"a"
.p2align 6
.amdhsa_kernel {name}
  .amdhsa_next_free_vgpr {vgpr}
  .amdhsa_next_free_sgpr {sgpr}
  .amdhsa_accum_offset {((vgpr+3)//4)*4}
  .amdhsa_group_segment_fixed_size 0
  .amdhsa_kernarg_size 64
  .amdhsa_user_sgpr_count 2
  .amdhsa_user_sgpr_kernarg_segment_ptr 1
  .amdhsa_system_sgpr_workgroup_id_x 1
.end_amdhsa_kernel
.text""")

def pat_rows(a, vdst, p, per_row16, magic, vt0, vt1):
    a(f"""
    v_add_u32 {vdst}, {64*p}, v2
    v_mul_u32_u24 {vt0}, {magic}, {vdst}
    v_lshrrev_b32 {vt0}, 16, {vt0}
    v_mul_u32_u24 {vt1}, {per_row16}, {vt0}
    v_sub_u32 {vt1}, {vdst}, {vt1}
    """)

def gen_attn(a):
    name = "attn_kernel"
    prologue(a, name)
    a(f"""
    s_cmp_ge_u32 s3, 4
    s_cbranch_scc1 {name}_loaders
    """)
    a("""
    v_lshrrev_b32 v3, 4, v2          ; g
    v_and_b32 v4, 15, v2             ; m / q'
    v_bfe_u32 v5, v2, 2, 2           ; r
    v_and_b32 v6, 3, v2              ; c
    """)
    a("""
    s_lshl_b32 s8, s5, 5
    s_add_u32 s8, s8, s6
    s_mul_i32 s8, s8, 24576
    """)
    srd(a, 48, 30, 8, 24576)
    a("""
    v_lshlrev_b32 v7, 3, v3
    v_add_u32 v7, v7, v5             ; row = 8g+r
    v_mul_u32_u24 v7, 384, v7
    v_lshl_add_u32 v7, v6, 3, v7     ; + 8c
    v_lshrrev_b32 v8, 1, v5          ; bit1(r)
    v_and_b32 v9, 1, v3
    v_lshl_add_u32 v8, v9, 1, v8     ; f
    s_mul_i32 s9, s3, 3              ; t0 = 3w
    """)
    for jj in range(3):
        a(f"""
        s_add_u32 s10, s9, {jj}
        v_xor_b32 v9, s10, v8
        v_lshl_add_u32 v{10+jj}, v9, 5, v7
        """)
    a("""
    v_lshrrev_b32 v8, 3, v4
    v_lshlrev_b32 v8, 1, v8
    v_xor_b32 v8, v8, v3
    v_lshlrev_b32 v8, 4, v8
    v_lshl_add_u32 v13, v4, 6, v8
    v_add_u32 v13, 12288, v13
    """)
    a("""
    v_and_b32 v8, 6, v4
    v_xor_b32 v8, v8, v3
    v_lshlrev_b32 v8, 4, v8
    v_mul_u32_u24 v9, 384, v4
    v_add_u32 v14, v8, v9
    v_xor_b32 v15, 64, v14
    """)
    ACC = 64
    SET = [112, 140]
    for r in range(48):
        a(f"v_mov_b32 v{ACC+r}, 0")
    for r in range(28):
        a(f"v_mov_b32 v{SET[1]+r}, 0")
    a(f"s_mov_b32 s12, {RING1_BASE + 4*RING1_SLOT}")
    a("s_mov_b32 s13, 10")
    a.label("attn_c_loop")
    for half in range(2):
        cur, prev = SET[half], SET[1-half]
        a(f"""
        v_add_u32 v16, s12, v10
        v_add_u32 v17, s12, v11
        v_add_u32 v18, s12, v12
        v_add_u32 v19, s12, v13
        s_add_u32 s12, s12, {RING1_SLOT}
        s_cmp_ge_u32 s12, {RING1_END}
        s_cselect_b32 s14, {RING1_N*RING1_SLOT}, 0
        s_sub_u32 s12, s12, s14
        s_barrier
        """)
        reads = []
        for qt in range(4):
            reads.append(f"ds_read_b128 {vr(cur+12+4*qt,4)}, v19 offset:{1024*qt}")
        for jj in range(3):
            reads.append(f"ds_read_b64_tr_b16 {vr(cur+4*jj,2)}, v{16+jj}")
            reads.append(f"ds_read_b64_tr_b16 {vr(cur+4*jj+2,2)}, v{16+jj} offset:1536")
        k = 0
        for jj in range(3):
            for qt in range(4):
                t = ACC + 4*(jj*4+qt)
                a(f"v_mfma_f32_16x16x32_bf16 {vr(t,4)}, {vr(prev+4*jj,4)}, {vr(prev+12+4*qt,4)}, {vr(t,4)}")
                if k < len(reads):
                    a(reads[k]); k += 1
        a("s_waitcnt lgkmcnt(0)")
    a("""
    s_sub_u32 s13, s13, 1
    s_cmp_lg_u32 s13, 0
    s_cbranch_scc1 attn_c_loop
    """)
    prev = SET[1]
    for jj in range(3):
        for qt in range(4):
            t = ACC + 4*(jj*4+qt)
            a(f"v_mfma_f32_16x16x32_bf16 {vr(t,4)}, {vr(prev+4*jj,4)}, {vr(prev+12+4*qt,4)}, {vr(t,4)}")
    a("""
    v_lshrrev_b32 v8, 1, v3          ; g>>1
    v_and_b32 v9, 6, v4              ; q'&6
    v_mul_u32_u24 v7, 384, v4
    v_and_b32 v20, 1, v3
    v_lshl_add_u32 v7, v20, 3, v7    ; 384q' + 8(g&1)
    s_mul_i32 s9, s3, 6
    """)
    for jj in range(3):
        a(f"""
        s_add_u32 s10, s9, {2*jj}
        v_add_u32 v20, s10, v8
        v_xor_b32 v20, v20, v9
        v_lshl_add_u32 v{21+jj}, v20, 4, v7
        v_add_u32 v{21+jj}, {R2}, v{21+jj}
        """)
    a("s_nop 7")
    for jj in range(3):
        for qt in range(4):
            t = ACC + 4*(jj*4+qt)
            a(f"""
            v_cvt_pk_bf16_f32 v{24+2*(qt&1)}, v{t}, v{t+1}
            v_cvt_pk_bf16_f32 v{25+2*(qt&1)}, v{t+2}, v{t+3}
            ds_write_b64 v{21+jj}, {vr(24+2*(qt&1),2)} offset:{6144*qt}
            """)
    a("s_waitcnt lgkmcnt(0)\ns_barrier")
    KF, QF, S = 112, 208, 232
    a(f"""
    s_mul_i32 s9, s3, 6144
    s_add_u32 s9, s9, {R2}
    v_add_u32 v16, s9, v14
    v_add_u32 v17, s9, v15
    """)
    def rd_s(s):
        va = "v14" if s % 2 == 0 else "v15"
        vq = "v16" if s % 2 == 0 else "v17"
        a(f"ds_read_b128 {vr(QF+4*s,4)}, {vq} offset:{128*(s>>1)}")
        for kt in range(4):
            a(f"ds_read_b128 {vr(KF+16*s+4*kt,4)}, {va} offset:{R0+6144*kt+128*(s>>1)}")
    rd_s(0); rd_s(1); rd_s(2)
    for s in range(6):
        a(f"s_waitcnt lgkmcnt({min(10, 5*(5-s))})")
        for kt in range(4):
            c = "0" if s == 0 else vr(S+4*kt,4)
            a(f"v_mfma_f32_16x16x32_bf16 {vr(S+4*kt,4)}, {vr(KF+16*s+4*kt,4)}, {vr(QF+4*s,4)}, {c}")
        if s + 3 < 6:
            rd_s(s+3)
    a(f"""
    v_lshl_add_u32 v7, v3, 2, v5     ; key = 4g+r
    v_lshrrev_b32 v8, 1, v7
    v_and_b32 v8, 3, v8              ; f
    v_mul_u32_u24 v7, 384, v7
    v_lshl_add_u32 v7, v6, 3, v7
    v_add_u32 v7, {R1}, v7
    """)
    for tt in range(4):
        a(f"""
        v_xor_b32 v9, {tt}, v8
        v_lshl_add_u32 v{28+tt}, v9, 5, v7
        """)
    VF = 112
    for t in range(12):
        for s in range(2):
            for hf in range(2):
                a(f"ds_read_b64_tr_b16 {vr(VF+8*t+4*s+2*hf,2)}, v{28+(t&3)} offset:{128*(t>>2)+12288*s+6144*hf}")
    a(f"""
    v_max3_f32 v8, v{S}, v{S+1}, v{S+2}
    v_max3_f32 v8, v8, v{S+3}, v{S+4}
    v_max3_f32 v8, v8, v{S+5}, v{S+6}
    v_max3_f32 v8, v8, v{S+7}, v{S+8}
    v_max3_f32 v8, v8, v{S+9}, v{S+10}
    v_max3_f32 v8, v8, v{S+11}, v{S+12}
    v_max3_f32 v8, v8, v{S+13}, v{S+14}
    v_max_f32 v8, v8, v{S+15}
    v_mov_b32 v9, v8
    s_nop 1
    v_permlane16_swap_b32 v8, v9
    v_max_f32 v8, v8, v9
    v_mov_b32 v9, v8
    s_nop 1
    v_permlane32_swap_b32 v8, v9
    v_max_f32 v8, v8, v9
    s_mov_b32 s9, 0x3dd53b95
    v_mul_f32 v8, s9, v8
    """)
    for r in range(16):
        a(f"v_fma_f32 v{S+r}, v{S+r}, s9, -v8")
    for r in range(16):
        a(f"v_exp_f32 v{S+r}, v{S+r}")
    a(f"""
    s_nop 0
    v_add_f32 v8, v{S}, v{S+1}
    v_add_f32 v9, v{S+2}, v{S+3}
    """)
    for r in range(4, 16, 2):
        a(f"v_add_f32 v8, v8, v{S+r}\nv_add_f32 v9, v9, v{S+r+1}")
    a("""
    v_add_f32 v8, v8, v9
    v_mov_b32 v9, v8
    s_nop 1
    v_permlane16_swap_b32 v8, v9
    v_add_f32 v8, v8, v9
    v_mov_b32 v9, v8
    s_nop 1
    v_permlane32_swap_b32 v8, v9
    v_add_f32 v8, v8, v9
    v_rcp_f32 v8, v8
    s_nop 0
    """)
    for r in range(16):
        a(f"v_mul_f32 v{S+r}, v{S+r}, v8")
    P = 208
    for i in range(8):
        a(f"v_cvt_pk_bf16_f32 v{P+i}, v{S+2*i}, v{S+2*i+1}")
    a(f"""
    v_lshrrev_b32 v8, 1, v3
    v_and_b32 v9, 6, v4
    v_mul_u32_u24 v7, 384, v4
    v_and_b32 v20, 1, v3
    v_lshl_add_u32 v7, v20, 3, v7
    s_mul_i32 s9, s3, 6144
    s_add_u32 s9, s9, {R3}
    v_add_u32 v7, s9, v7
    """)
    for tt in range(4):
        a(f"""
        v_add_u32 v20, {2*tt}, v8
        v_xor_b32 v20, v20, v9
        v_lshl_add_u32 v{32+tt}, v20, 4, v7
        """)
    a("s_waitcnt lgkmcnt(0)")
    for s in range(2):
        for t in range(12):
            c = "0" if s == 0 else vr(ACC+4*t,4)
            a(f"v_mfma_f32_16x16x32_bf16 {vr(ACC+4*t,4)}, {vr(VF+8*t+4*s,4)}, {vr(P+4*s,4)}, {c}")
    a("s_nop 7")
    for t in range(12):
        a(f"""
        v_cvt_pk_bf16_f32 v{24+2*(t&1)}, v{ACC+4*t}, v{ACC+4*t+1}
        v_cvt_pk_bf16_f32 v{25+2*(t&1)}, v{ACC+4*t+2}, v{ACC+4*t+3}
        ds_write_b64 v{32+(t&3)}, {vr(24+2*(t&1),2)} offset:{128*(t>>2)}
        """)
    a("s_waitcnt lgkmcnt(0)\ns_barrier")
    a(f"""
    s_mul_i32 s9, s3, 6144
    v_lshlrev_b32 v7, 4, v2
    v_add_u32 v7, s9, v7
    v_add_u32 v8, {R3}, v7
    """)
    for p in range(6):
        a(f"ds_read_b128 {vr(112+4*p,4)}, v8 offset:{1024*p}")
    for p in range(6):
        a(f"s_waitcnt lgkmcnt({5-p})")
        off = 1024*p
        if off < 4096:
            a(f"buffer_store_dwordx4 {vr(112+4*p,4)}, v7, s[48:51], 0 offen offset:{off}")
        else:
            a(f"s_movk_i32 s10, {off}\nbuffer_store_dwordx4 {vr(112+4*p,4)}, v7, s[48:51], s10 offen")
    a("s_endpgm")

    a.label(f"{name}_loaders")
    a(f"""
    s_cmp_eq_u32 s3, 6
    s_cbranch_scc1 {name}_ldx
    s_cmp_eq_u32 s3, 7
    s_cbranch_scc1 {name}_ldkv
    """)
    srd(a, 36, 22, None, 7864320)
    for p in range(3):
        pat_rows(a, "v7", p, 24, 2731, "v8", "v9")
        a(f"""
        v_and_b32 v7, 2, v8              ; 2*bit1(rho)
        v_xor_b32 v9, v9, v7
        v_mul_u32_u24 v8, 12288, v8
        v_lshl_add_u32 v{10+p}, v9, 4, v8
        v_xor_b32 v{13+p}, 64, v{10+p}
        v_add_u32 v{13+p}, {8*12288 - 1024*p}, v{13+p}
        """)
        if p:
            a(f"v_subrev_u32 v{10+p}, {1024*p}, v{10+p}")
    a(f"""
    s_sub_u32 s8, s3, 4                  ; Lw
    s_mul_i32 s9, s8, {16*12288}
    s_mul_i32 s10, s6, 384
    s_add_u32 s9, s9, s10                ; soffset
    s_mul_i32 s11, s8, 6144
    s_add_u32 s12, s11, {RING1_BASE + 4*RING1_SLOT}
    s_add_u32 s15, s11, {RING1_END}
    """)
    def issue_w():
        a(f"""
        s_mov_b32 m0, s12
        s_add_u32 s10, s12, 3072
        buffer_load_dwordx4 v10, s[36:39], s9 offen lds
        buffer_load_dwordx4 v11, s[36:39], s9 offen offset:1024 lds
        buffer_load_dwordx4 v12, s[36:39], s9 offen offset:2048 lds
        s_mov_b32 m0, s10
        s_add_u32 s12, s12, {RING1_SLOT}
        buffer_load_dwordx4 v13, s[36:39], s9 offen lds
        buffer_load_dwordx4 v14, s[36:39], s9 offen offset:1024 lds
        buffer_load_dwordx4 v15, s[36:39], s9 offen offset:2048 lds
        s_add_u32 s9, s9, {32*12288}
        s_cmp_ge_u32 s12, s15
        s_cselect_b32 s14, {RING1_N*RING1_SLOT}, 0
        s_sub_u32 s12, s12, s14
        """)
    a("s_mov_b32 s13, 6")
    a.label("attn_w_pro")
    issue_w()
    a("s_sub_u32 s13, s13, 1\ns_cmp_lg_u32 s13, 0\ns_cbranch_scc1 attn_w_pro")
    a("s_mov_b32 s13, 14")
    a.label("attn_w_loop")
    a("s_waitcnt vmcnt(30)\ns_barrier")
    issue_w()
    a("s_sub_u32 s13, s13, 1\ns_cmp_lg_u32 s13, 0\ns_cbranch_scc1 attn_w_loop")
    for i in range(14, 20):
        a(f"s_waitcnt vmcnt({6*(19-i)})\ns_barrier")
    a("s_barrier\ns_endpgm")
    a.label(f"{name}_ldx")
    a("s_mul_i32 s8, s5, 81920")
    srd(a, 32, 16, 8, 81920)
    a("""
    v_lshrrev_b32 v7, 2, v2
    v_mul_u32_u24 v7, 1280, v7
    v_lshrrev_b32 v8, 5, v2
    v_lshlrev_b32 v8, 1, v8
    v_and_b32 v9, 3, v2
    v_xor_b32 v8, v8, v9
    v_lshl_add_u32 v10, v8, 4, v7
    """)
    for p in range(1, 4):
        a(f"v_add_u32 v{10+p}, {19456*p}, v10")
    a(f"""
    s_mov_b32 s9, 0
    s_mov_b32 s12, {RING1_BASE + 4*RING1_SLOT + 12288}
    """)
    def issue_x():
        a(f"""
        s_mov_b32 m0, s12
        s_add_u32 s12, s12, {RING1_SLOT}
        buffer_load_dwordx4 v10, s[32:35], s9 offen lds
        buffer_load_dwordx4 v11, s[32:35], s9 offen offset:1024 lds
        buffer_load_dwordx4 v12, s[32:35], s9 offen offset:2048 lds
        buffer_load_dwordx4 v13, s[32:35], s9 offen offset:3072 lds
        s_add_u32 s9, s9, 64
        s_cmp_ge_u32 s12, {RING1_END}
        s_cselect_b32 s14, {RING1_N*RING1_SLOT}, 0
        s_sub_u32 s12, s12, s14
        """)
    a("s_mov_b32 s13, 6")
    a.label("attn_x_pro")
    issue_x()
    a("s_sub_u32 s13, s13, 1\ns_cmp_lg_u32 s13, 0\ns_cbranch_scc1 attn_x_pro")
    a("s_mov_b32 s13, 14")
    a.label("attn_x_loop")
    a("s_waitcnt vmcnt(20)\ns_barrier")
    issue_x()
    a("s_sub_u32 s13, s13, 1\ns_cmp_lg_u32 s13, 0\ns_cbranch_scc1 attn_x_loop")
    for i in range(14, 20):
        a(f"s_waitcnt vmcnt({4*(19-i)})\ns_barrier")
    a("s_barrier\ns_endpgm")
    a.label(f"{name}_ldkv")
    a("""
    s_lshl_b32 s8, s5, 5
    s_add_u32 s8, s8, s6
    s_mul_i32 s8, s8, 24576
    """)
    srd(a, 40, 18, 8, 24576)
    srd(a, 44, 20, 8, 24576)
    for p in range(3):
        pat_rows(a, "v7", p, 24, 2731, "v8", "v9")
        a(f"""
        v_and_b32 v7, 6, v8
        v_xor_b32 v9, v9, v7
        v_mul_u32_u24 v8, 384, v8
        v_lshl_add_u32 v{10+p}, v9, 4, v8
        """)
        if p:
            a(f"v_subrev_u32 v{10+p}, {1024*p}, v{10+p}")
    a("s_mov_b32 s9, 0")
    a.label("attn_kv_loop")
    a(f"""
    s_add_u32 m0, s9, {R0}
    s_add_u32 s10, s9, {R1}
    buffer_load_dwordx4 v10, s[40:43], s9 offen lds
    buffer_load_dwordx4 v11, s[40:43], s9 offen offset:1024 lds
    buffer_load_dwordx4 v12, s[40:43], s9 offen offset:2048 lds
    s_mov_b32 m0, s10
    s_nop 0
    buffer_load_dwordx4 v10, s[44:47], s9 offen lds
    buffer_load_dwordx4 v11, s[44:47], s9 offen offset:1024 lds
    buffer_load_dwordx4 v12, s[44:47], s9 offen offset:2048 lds
    s_add_u32 s9, s9, 3072
    s_cmp_lt_u32 s9, 24576
    s_cbranch_scc1 attn_kv_loop
    s_mov_b32 s13, 20
    """)
    a.label("attn_kv_bar")
    a("s_barrier\ns_sub_u32 s13, s13, 1\ns_cmp_lg_u32 s13, 0\ns_cbranch_scc1 attn_kv_bar")
    a("s_waitcnt vmcnt(0)\ns_barrier\ns_endpgm")
    a.label(f"{name}_end")
    a("s_endpgm")
    descriptor(a, name)

def gen_gemm2(a):
    name = "gemm2_kernel"
    prologue(a, name)
    a(f"""
    s_cmp_ge_u32 s3, 4
    s_cbranch_scc1 {name}_loaders
    """)
    a("""
    v_lshrrev_b32 v3, 4, v2          ; g
    v_and_b32 v4, 15, v2             ; m / q'
    v_bfe_u32 v5, v2, 2, 2           ; r
    v_and_b32 v6, 3, v2              ; c
    s_and_b32 s8, s3, 1              ; wq
    s_lshr_b32 s9, s3, 1             ; wn
    """)
    a(f"""
    s_lshl_b32 s10, s5, 2
    s_add_u32 s10, s10, s7
    s_lshl_b32 s10, s10, 3
    s_add_u32 s10, s10, s4
    s_mul_i32 s10, s10, 40960
    s_add_u32 s10, s10, {WS_P}
    """)
    srd(a, 48, 30, 10, 40960)
    a("""
    v_and_b32 v8, 6, v4
    v_xor_b32 v8, v8, v3
    v_lshlrev_b32 v8, 4, v8
    v_mul_u32_u24 v9, 384, v4
    v_add_u32 v14, v8, v9
    s_mul_i32 s10, s8, 12288
    v_add_u32 v14, s10, v14
    v_xor_b32 v15, 64, v14
    """)
    a(f"""
    v_lshl_add_u32 v7, v3, 3, v5
    v_mul_u32_u24 v7, 320, v7
    v_lshl_add_u32 v7, v6, 3, v7
    s_mul_i32 s10, s9, 160
    s_add_u32 s10, s10, {RA}
    v_add_u32 v7, s10, v7
    v_and_b32 v8, 1, v3
    v_lshlrev_b32 v8, 5, v8
    v_add_u32 v10, v7, v8            ; even t
    v_sub_u32 v11, v7, v8            ; odd t
    s_cmp_eq_u32 s9, 0
    s_cbranch_scc1 g2_noswap
    v_mov_b32 v12, v10
    v_mov_b32 v10, v11
    v_mov_b32 v11, v12
    """)
    a.label("g2_noswap")
    ACC = 64
    SET = [112, 140]
    for r in range(40):
        a(f"v_mov_b32 v{ACC+r}, 0")
    for r in range(28):
        a(f"v_mov_b32 v{SET[1]+r}, 0")
    a("s_mov_b32 s13, 4")
    a.label("g2_c_loop")
    for kk in range(6):
        cur, prev = SET[kk & 1], SET[1-(kk & 1)]
        a("s_barrier")
        reads = []
        va = "v14" if kk % 2 == 0 else "v15"
        for qt in range(2):
            reads.append(f"ds_read_b128 {vr(cur+20+4*qt,4)}, {va} offset:{6144*qt+128*(kk>>1)}")
        for jj in range(5):
            vb = "v10" if jj % 2 == 0 else "v11"
            reads.append(f"ds_read_b64_tr_b16 {vr(cur+4*jj,2)}, {vb} offset:{10240*kk+32*jj}")
            reads.append(f"ds_read_b64_tr_b16 {vr(cur+4*jj+2,2)}, {vb} offset:{10240*kk+32*jj+1280}")
        k = 0
        n = 0
        for jj in range(5):
            for qt in range(2):
                t = ACC + 4*(jj*2+qt)
                a(f"v_mfma_f32_16x16x32_bf16 {vr(t,4)}, {vr(prev+4*jj,4)}, {vr(prev+20+4*qt,4)}, {vr(t,4)}")
                n += 1
                take = 2 if n <= 2 else 1
                for _ in range(take):
                    if k < len(reads):
                        a(reads[k]); k += 1
        assert k == len(reads)
        a("s_waitcnt lgkmcnt(0)")
    a("""
    v_add_u32 v14, 24576, v14
    v_add_u32 v15, 24576, v15
    s_sub_u32 s13, s13, 1
    s_cmp_lg_u32 s13, 0
    s_cbranch_scc1 g2_c_loop
    """)
    prev = SET[1]
    for jj in range(5):
        for qt in range(2):
            t = ACC + 4*(jj*2+qt)
            a(f"v_mfma_f32_16x16x32_bf16 {vr(t,4)}, {vr(prev+4*jj,4)}, {vr(prev+20+4*qt,4)}, {vr(t,4)}")
    a("""
    v_lshlrev_b32 v7, 4, v2
    s_mul_i32 s10, s8, 20480
    s_mul_i32 s11, s9, 5120
    s_add_u32 s10, s10, s11
    s_nop 7
    """)
    for qt in range(2):
        for jj in range(5):
            t = ACC + 4*(jj*2+qt)
            a(f"s_add_u32 s11, s10, {10240*qt+1024*jj}")
            a(f"buffer_store_dwordx4 {vr(t,4)}, v7, s[48:51], s11 offen")
    a("s_endpgm")
    a.label(f"{name}_loaders")
    a(f"""
    s_cmp_ge_u32 s3, 6
    s_cbranch_scc1 {name}_ldo
    """)
    srd(a, 36, 24, None, 7864320)
    for p in range(5):
        pat_rows(a, "v7", p, 20, 3277, "v8", "v9")
        p0 = 0 if p < 3 else 3
        a(f"""
        v_lshrrev_b32 v7, 3, v8
        v_lshlrev_b32 v7, 1, v7          ; 2*bit3(rho)
        v_xor_b32 v9, v9, v7
        v_mul_u32_u24 v8, 1280, v8
        v_lshl_add_u32 v{10+p}, v9, 4, v8
        """)
        if p != p0:
            a(f"v_subrev_u32 v{10+p}, {1024*(p-p0)}, v{10+p}")
    a(f"""
    s_sub_u32 s8, s3, 4
    s_mul_i32 s9, s4, 768
    s_lshl_b32 s10, s8, 4
    s_add_u32 s9, s9, s10
    s_mul_i32 s9, s9, 1280
    s_mul_i32 s10, s7, 320
    s_add_u32 s9, s9, s10                ; soffset
    s_mul_i32 s11, s8, 5120
    s_add_u32 s12, s11, {RA}
    s_add_u32 s15, s11, {RA + 6*10240}
    """)
    def issue_wo():
        a(f"""
        s_mov_b32 m0, s12
        s_add_u32 s10, s12, 3072
        buffer_load_dwordx4 v10, s[36:39], s9 offen lds
        buffer_load_dwordx4 v11, s[36:39], s9 offen offset:1024 lds
        buffer_load_dwordx4 v12, s[36:39], s9 offen offset:2048 lds
        s_mov_b32 m0, s10
        s_add_u32 s12, s12, 10240
        buffer_load_dwordx4 v13, s[36:39], s9 offen lds
        buffer_load_dwordx4 v14, s[36:39], s9 offen offset:1024 lds
        s_add_u32 s9, s9, {32*1280}
        s_cmp_ge_u32 s12, s15
        s_cselect_b32 s14, {6*10240}, 0
        s_sub_u32 s12, s12, s14
        """)
    a("s_mov_b32 s13, 5")
    a.label("g2_w_pro")
    issue_wo()
    a("s_sub_u32 s13, s13, 1\ns_cmp_lg_u32 s13, 0\ns_cbranch_scc1 g2_w_pro")
    a("s_mov_b32 s13, 19")
    a.label("g2_w_loop")
    a("s_waitcnt vmcnt(20)\ns_barrier")
    issue_wo()
    a("s_sub_u32 s13, s13, 1\ns_cmp_lg_u32 s13, 0\ns_cbranch_scc1 g2_w_loop")
    for i in range(19, 24):
        a(f"s_waitcnt vmcnt({5*(23-i)})\ns_barrier")
    a("s_endpgm")
    a.label(f"{name}_ldo")
    a(f"""
    s_sub_u32 s8, s3, 6
    s_lshl_b32 s8, s8, 1
    s_lshl_b32 s9, s5, 5
    s_lshl_b32 s10, s4, 2
    s_add_u32 s9, s9, s10
    s_add_u32 s9, s9, s8                 ; b*32 + 4j + tile
    s_mul_i32 s9, s9, 24576
    """)
    srd(a, 40, 30, 9, 49152)
    a(f"""
    v_lshlrev_b32 v10, 4, v2
    s_mul_i32 s12, s8, 24576
    s_mov_b32 s9, 0
    """)
    a.label("g2_o_loop")
    a(f"""
    s_add_u32 m0, s12, s9
    s_nop 0
    buffer_load_dwordx4 v10, s[40:43], s9 offen lds
    buffer_load_dwordx4 v10, s[40:43], s9 offen offset:1024 lds
    buffer_load_dwordx4 v10, s[40:43], s9 offen offset:2048 lds
    buffer_load_dwordx4 v10, s[40:43], s9 offen offset:3072 lds
    s_add_u32 s9, s9, 4096
    s_cmp_lt_u32 s9, 49152
    s_cbranch_scc1 g2_o_loop
    s_waitcnt vmcnt(0)
    s_mov_b32 s13, 24
    """)
    a.label("g2_o_bar")
    a("s_barrier\ns_sub_u32 s13, s13, 1\ns_cmp_lg_u32 s13, 0\ns_cbranch_scc1 g2_o_bar")
    a("s_endpgm")
    a.label(f"{name}_end")
    a("s_endpgm")
    descriptor(a, name)

def gen_reduce(a):
    name = "reduce_kernel"
    a.raw(f".globl {name}\n.p2align 8\n.type {name},@function")
    a.label(name)
    a(f"""
    s_cmp_ge_u32 s2, 256
    s_cbranch_scc1 {name}_end
    s_load_dwordx16 s[16:31], s[0:1], 0
    v_lshrrev_b32 v1, 6, v0
    v_and_b32 v2, 63, v0
    v_readfirstlane_b32 s3, v1
    s_lshr_b32 s4, s2, 3                 ; bc
    s_and_b32 s5, s2, 7                  ; grp
    s_mul_i32 s6, s5, 5
    s_add_u32 s6, s6, s3                 ; tau
    s_waitcnt lgkmcnt(0)
    s_mul_i32 s8, s4, {8*40960}
    s_add_u32 s8, s8, {WS_P}
    """)
    srd(a, 48, 30, 8, 8*40960)
    srd(a, 44, 26, None, 655360)
    a("""
    v_lshlrev_b32 v7, 4, v2
    s_lshl_b32 s9, s6, 10
    """)
    for j in range(8):
        a(f"s_add_u32 s10, s9, {40960*j}")
        a(f"buffer_load_dwordx4 {vr(16+4*j,4)}, v7, s[48:51], s10 offen")
    a("""
    s_mul_i32 s10, s6, 6554
    s_lshr_b32 s10, s10, 16              ; Q = tau/10
    s_mul_i32 s11, s10, 10
    s_sub_u32 s11, s6, s11               ; N
    s_lshr_b32 s12, s4, 2                ; b
    s_and_b32 s13, s4, 3                 ; c
    s_lshl_b32 s12, s12, 6
    s_lshl_b32 s10, s10, 4
    s_add_u32 s12, s12, s10
    s_mul_i32 s12, s12, 1280
    s_mul_i32 s13, s13, 320
    s_add_u32 s12, s12, s13
    s_lshl_b32 s11, s11, 5
    s_add_u32 s12, s12, s11
    v_and_b32 v4, 15, v2
    v_lshrrev_b32 v3, 4, v2
    v_mul_u32_u24 v4, 1280, v4
    v_lshl_add_u32 v4, v3, 3, v4
    """)
    for j in range(1, 8):
        a(f"s_waitcnt vmcnt({7-j})")
        for r in range(4):
            a(f"v_add_f32 v{16+r}, v{16+r}, v{16+4*j+r}")
    a("""
    v_cvt_pk_bf16_f32 v8, v16, v17
    v_cvt_pk_bf16_f32 v9, v18, v19
    buffer_store_dwordx2 v[8:9], v4, s[44:47], s12 offen
    """)
    a.label(f"{name}_end")
    a("s_endpgm")
    descriptor(a, name, vgpr=64, sgpr=64)

HEADER = open("standalone__mha_block_cached__near_ridge.s.ref").read().split("; Override")[0]

def main(out):
    a = Asm()
    a.raw(HEADER.rstrip("\n"))
    a.raw("; @launch kernel=attn_kernel grid=(256,1,1) block=(512,1,1) lds=163840")
    a.raw("; @launch kernel=gemm2_kernel grid=(256,1,1) block=(512,1,1) lds=163840")
    a.raw("; @launch kernel=reduce_kernel grid=(256,1,1) block=(320,1,1) lds=0")
    a.raw('.amdgcn_target "amdgcn-amd-amdhsa--gfx950"\n.text')
    gen_attn(a)
    gen_gemm2(a)
    gen_reduce(a)
    open(out, "w").write(a.text())

if __name__ == "__main__":
    main(sys.argv[1] if len(sys.argv) > 1 else "v1.s")
```
